```python
import torch

def _softmax(x, axis=-1):
    return torch.softmax(x, dim=axis)
def _gelu(x):
    return torch.nn.functional.gelu(x, approximate="tanh")
def _silu(x):
    return torch.nn.functional.silu(x)
def _sigmoid(x):
    return torch.sigmoid(x)
def _layernorm(x, axis=-1, eps=1e-5):
    m = x.mean(dim=axis, keepdim=True)
    v = x.var(dim=axis, keepdim=True, unbiased=False)
    return (x - m) / torch.sqrt(v + eps)
def _scatter_add(tgt, idx, src, axis=0):
    return tgt.clone().index_add_(axis, idx, src)
def _segment_sum(src, seg, n):
    out = torch.zeros((n,) + src.shape[1:], dtype=src.dtype)
    return out.index_add_(0, seg, src)
def _pad(x, pw):
    flat = tuple(v for pair in reversed(pw) for v in pair)
    return torch.nn.functional.pad(x, flat)

kernel_name = 'parallel_sum__ssm_conv_h3__swiglu_ffn__prompt'

def setup_inputs():

    _w = (lambda a: (lambda t: t.to(torch.bfloat16) if t.is_floating_point() else t)(torch.as_tensor(a)))
    def _A_setup():
        B, S, D = 1, 2048, 640
        ks = 4
        return {
            "q": _w((lambda *s: torch.randn(*s, dtype=torch.bfloat16) * 0.05)(B, S, D)),
            "k": _w((lambda *s: torch.randn(*s, dtype=torch.bfloat16) * 0.8)(B, S, D)),
            "v": _w((lambda *s: torch.randn(*s, dtype=torch.bfloat16) * 0.4)(B, S, D)),
            "shift_k": _w((lambda *s: torch.randn(*s, dtype=torch.bfloat16) * 0.8)(D, ks) * 0.5),
            "ssm_k": _w((lambda *s: torch.randn(*s, dtype=torch.bfloat16) * 0.8)(D, S) * (1.0 / S ** 0.5)),
            "ssm_D": _w((lambda *s: torch.randn(*s, dtype=torch.bfloat16) * 0.4)(D)),
        }
    _A_in = _A_setup()

    def _B_setup():
        B, S, D, F = 1, 2048, 640, 1728
        return {
            "x": _w((lambda *s: torch.randn(*s, dtype=torch.bfloat16) * 0.05)(B, S, D)),
            "w_gate": _w((lambda *s: torch.randn(*s, dtype=torch.bfloat16) * 0.05)(D, F)),
            "w_up": _w((lambda *s: torch.randn(*s, dtype=torch.bfloat16) * 0.05)(D, F)),
            "w_down": _w((lambda *s: torch.randn(*s, dtype=torch.bfloat16) * 0.05)(F, D)),
        }
    _B_in = _B_setup()

    return {
        "A_q": _A_in["q"],
        "A_k": _A_in["k"],
        "A_v": _A_in["v"],
        "A_shift_k": _A_in["shift_k"],
        "A_ssm_k": _A_in["ssm_k"],
        "A_ssm_D": _A_in["ssm_D"],
        "B_x": _B_in["x"],
        "B_w_gate": _B_in["w_gate"],
        "B_w_up": _B_in["w_up"],
        "B_w_down": _B_in["w_down"],
    }

def reference(A_q, A_k, A_v, A_shift_k, A_ssm_k, A_ssm_D, B_x, B_w_gate, B_w_up, B_w_down):
    def _A_ref(q, k, v, shift_k, ssm_k, ssm_D):
        B, S, D = q.shape
        ks = shift_k.shape[-1]
        k_pad = _pad(k, ((0, 0), (ks - 1, 0), (0, 0)))
        k_shift = torch.zeros_like(k)
        for t in range(ks):
            k_shift = k_shift + k_pad[:, t:t + S, :] * shift_k[:, ks - 1 - t][None, None, :]
        kv = k_shift * v
        L = 2 * S
        kv_pad = _pad(kv, ((0, 0), (0, S), (0, 0)))
        kf_pad = _pad(ssm_k, ((0, 0), (0, S)))
        kv_f = (lambda x, axes=(-2,-1): torch.fft.rfft2(x.float(), dim=axes))(kv_pad[:, None, :, :], axes=(1, 2))
        kf_f = (lambda x, axes=(-2,-1): torch.fft.rfft2(x.float(), dim=axes))(kf_pad[:, None, :], axes=(1, 2))
        kf_f = (lambda x, *d: x.permute(*d))(kf_f, 1, 2, 0)
        y_f = kv_f * kf_f[None, :, :, :]
        y = (lambda x, s, axes=(-2,-1): torch.fft.irfft2(x, s=s, dim=axes).to(torch.bfloat16))(y_f, (1, L), axes=(1, 2))[:, 0, :S, :]
        y = y + kv * ssm_D[None, None, :]
        return q * y

    def _B_ref(x, w_gate, w_up, w_down):
        g = _silu(x @ w_gate)
        u = x @ w_up
        return (g * u) @ w_down

    x = A_q
    xn = _layernorm(x, axis=-1)
    return x + _A_ref(xn, A_k, A_v, A_shift_k, A_ssm_k, A_ssm_D) + _B_ref(xn, B_w_gate, B_w_up, B_w_down)
```

```python
import re

def v(i, n=1): return f"v{i}" if n == 1 else f"v[{i}:{i+n-1}]"
def a(i, n=1): return f"a{i}" if n == 1 else f"a[{i}:{i+n-1}]"
def s(i, n=1): return f"s{i}" if n == 1 else f"s[{i}:{i+n-1}]"
def R(i, n=1):
    if i < 256:
        assert i + n <= 256, (i, n)
        return v(i, n)
    assert i + n <= 512
    return a(i - 256, n)

_REG = re.compile(r"^(-|abs\()?([vas])(?:(\d+)|\[(\d+):(\d+)\])\)?$")
def regs_of(tok):
    tok = tok.strip()
    if tok in ("vcc",): return {("s", "vcc")}
    if tok in ("exec",): return {("s", "exec")}
    if tok == "m0": return {("s", "m0")}
    tok2 = tok.replace("|", "")
    m = _REG.match(tok2)
    if not m: return set()
    k = m.group(2)
    if m.group(3) is not None: return {(k, int(m.group(3)))}
    return {(k, i) for i in range(int(m.group(4)), int(m.group(5)) + 1)}

TRANS = ("v_exp_f32", "v_log_f32", "v_rcp_f32", "v_rsq_f32", "v_sqrt_f32", "v_sin_f32", "v_cos_f32")

class I:
    def __init__(self, text, tag=None):
        self.text = text; self.tag = tag
        t = text.split(";")[0].strip()
        sp = t.split(None, 1)
        self.op = op = sp[0]
        rest = sp[1] if len(sp) > 1 else ""
        ops = []; cur = ""; d = 0
        for ch in rest:
            if ch in "[(": d += 1
            if ch in "])": d -= 1
            if ch == "," and d == 0: ops.append(cur.strip()); cur = ""
            else: cur += ch
        if cur.strip(): ops.append(cur.strip())
        mods = ""
        if ops:
            last = ops[-1].split(None, 1)
            ops[-1] = last[0]
            if len(last) > 1: mods = last[1]
        self.ops = ops; self.mods = mods
        rs = [regs_of(o) for o in ops]
        U = lambda l: set().union(*l) if l else set()
        self.kind = None; self.dst = set(); self.src = set(); self.passes = 0
        self.A = self.B = self.C = set(); self.dpp = False; self.stdata = set(); self.states = 1
        if op.startswith("v_mfma"):
            self.kind = "mfma"; self.dst = rs[0]; self.A, self.B, self.C = rs[1], rs[2], rs[3]
            self.src = rs[1] | rs[2] | rs[3]
            self.passes = 8 if "32x32x16" in op else 4
        elif op.startswith("v_"):
            self.kind = "valu"
            self.dst = rs[0]; self.src = U(rs[1:])
            if op.startswith("v_permlane"):
                self.dst = rs[0] | rs[1]; self.src = rs[0] | rs[1]
            if op.startswith(("v_fmac", "v_dot2c", "v_writelane", "v_pk_fmac")): self.src |= rs[0]
            if op.endswith("_dpp"):
                self.dpp = True; self.src |= rs[0]
            if op.startswith(("v_add_co", "v_sub_co", "v_addc_co", "v_subb_co")):
                self.dst = rs[0] | rs[1]; self.src = U(rs[2:])
            if op.startswith("v_cndmask") and len(ops) == 3: self.src |= {("s", "vcc")}
        elif op.startswith("ds_read") or op.startswith("ds_bpermute") or op.startswith("ds_swizzle"):
            self.kind = "ds"; self.dst = rs[0]; self.src = U(rs[1:])
        elif op.startswith("ds_"):
            self.kind = "ds"; self.src = U(rs)
        elif op.startswith("global_load_lds"):
            self.kind = "vm"; self.src = U(rs) | {("s", "m0")}; self.ldsdma = True
        elif op.startswith("buffer_load") and " lds" in (" " + mods):
            self.kind = "vm"; self.src = U(rs) | {("s", "m0")}; self.ldsdma = True
        elif op.startswith(("global_load", "buffer_load")):
            self.kind = "vm"; self.dst = rs[0]; self.src = U(rs[1:])
        elif op.startswith("global_store"):
            self.kind = "vm"; self.src = U(rs)
            if "x4" in op or "x3" in op: self.stdata = rs[1]
        elif op.startswith("buffer_store"):
            self.kind = "vm"; self.src = U(rs)
            if "x4" in op or "x3" in op: self.stdata = rs[0]
        elif op.startswith(("global_atomic", "buffer_atomic")):
            self.kind = "vm"
            if "sc0" in mods and op.startswith("global"): self.dst = rs[0]; self.src = U(rs[1:])
            else: self.src = U(rs)
        elif op.startswith(("buffer_inv", "buffer_wbl2")):
            self.kind = "vm"
        elif op.startswith(("s_load", "s_memtime", "s_memrealtime", "s_buffer_load")):
            self.kind = "smem"; self.dst = rs[0]; self.src = U(rs[1:])
        elif op == "s_nop":
            self.kind = "nop"; self.states = int(ops[0]) + 1
        elif op.startswith(("s_waitcnt", "s_barrier", "s_sleep", "s_setprio", "s_endpgm", "s_branch", "s_cbranch")):
            self.kind = "ctl"
            if "vcc" in op: self.src = {("s", "vcc")}
        elif op.startswith(("s_cmp", "s_bitcmp")):
            self.kind = "salu"; self.src = U(rs)
        elif op.startswith("s_setpc"):
            self.kind = "ctl"; self.src = U(rs)
        elif op.startswith("s_"):
            self.kind = "salu"; self.dst = rs[0]; self.src = U(rs[1:])
            if "saveexec" in op: self.dst |= {("s", "exec")}
            if op.startswith(("s_addk", "s_mulk", "s_bitset")): self.src |= rs[0]
        else:
            raise ValueError("unknown instruction " + text)
        self.trans = op.replace("_e32", "").replace("_e64", "") in TRANS
        self.dot = op.startswith("v_dot")
        self.sdwa = op.endswith("_sdwa")
        if not hasattr(self, "ldsdma"): self.ldsdma = False

class WaitVM:
    def __init__(self, tags): self.tags = tags if isinstance(tags, (list, tuple, set)) else [tags]
class WaitLG:
    def __init__(self, tags): self.tags = tags if isinstance(tags, (list, tuple, set)) else [tags]

def vg(x): return {r for r in x if r[0] in "va"}
def sg(x): return {r for r in x if r[0] == "s"}

class Prog:
    def __init__(self):
        self.out = []; self.hist = []; self.vm = []; self.lg = []
        self.nins = 0; self.nnop = 0; self.stats = {}
    def raw(self, text): self.out.append(text)
    def comment(self, t): self.out.append("; " + t)
    def label(self, name):
        self.out.append(name + ":")
    def _push(self, ins):
        self.out.append("    " + ins.text); self.hist.append(ins); self.nins += 1
        if len(self.hist) > 40: self.hist.pop(0)
        self.stats[ins.kind] = self.stats.get(ins.kind, 0) + 1
    def _wait(self, vmn=None, lgn=None):
        parts = []
        if vmn is not None and vmn < len(self.vm):
            assert vmn <= 63, vmn
            parts.append(f"vmcnt({vmn})"); self.vm = self.vm[len(self.vm) - vmn:] if vmn else []
        if lgn is not None and lgn < len(self.lg):
            if any(x.kind == "smem" for x in self.lg): lgn = 0
            lgn = min(lgn, 15)
            parts.append(f"lgkmcnt({lgn})"); self.lg = self.lg[len(self.lg) - lgn:] if lgn else []
        if parts: self._push(I("s_waitcnt " + " ".join(parts)))
    def waitall(self, vm=True, lg=True): self._wait(0 if vm else None, 0 if lg else None)
    def forcewait(self, text):
        m = re.search(r"vmcnt\((\d+)\)", text)
        if m:
            n = int(m.group(1)); self.vm = self.vm[max(0, len(self.vm) - n):] if n else []
        m = re.search(r"lgkmcnt\((\d+)\)", text)
        if m:
            n = int(m.group(1)); self.lg = self.lg[max(0, len(self.lg) - n):] if n else []
        self._push(I(text))
    def _need(self, lst, pred):
        n = None
        for i, x in enumerate(lst):
            if pred(x): n = len(lst) - 1 - i
        return n
    def wait_tags(self, vm=(), lg=()):
        vm = set(vm); lg = set(lg)
        self._wait(self._need(self.vm, lambda x: x.tag in vm), self._need(self.lg, lambda x: x.tag in lg))
    def hazard(self, c):
        need = 0; dist = 0
        cv_src, cv_dst = vg(c.src), vg(c.dst)
        for p in reversed(self.hist):
            req = 0
            pv = vg(p.dst); ps = sg(p.dst)
            if p.kind == "valu":
                if c.kind == "mfma" and pv & cv_src: req = max(req, 2)
                if c.kind == "valu":
                    if c.dpp and pv & cv_src: req = max(req, 2)
                    if c.op.startswith("v_permlane") and pv & cv_src: req = max(req, 2)
                    if c.op.startswith(("v_readlane", "v_readfirstlane")) and pv & cv_src: req = max(req, 1)
                    if p.trans and not c.trans and pv & cv_src: req = max(req, 1)
                    if p.trans and c.trans and pv & cv_src: req = max(req, 1)
                    if p.sdwa and pv & (cv_src | cv_dst): req = max(req, 1)
                    if ps & sg(c.src):
                        req = max(req, 4 if c.op.startswith(("v_readlane", "v_writelane")) else 2)
                if p.dot and c.kind in ("valu", "mfma", "vm", "ds") and pv & (cv_src | cv_dst):
                    same = (c.op == p.op)
                    if same and c.kind == "valu":
                        ab = set().union(*[regs_of(o) for o in c.ops[1:3]])
                        if pv & ab: req = max(req, 3)
                    else: req = max(req, 3)
                if c.kind == "vm" and ps & sg(c.src): req = max(req, 5)
                if c.kind in ("salu", "smem", "ctl") and ps & sg(c.src): req = max(req, 1)
                if p.trans and c.kind in ("vm", "ds") and pv & cv_src: req = max(req, 1)
            if p.kind == "mfma":
                big = 12 if p.passes == 8 else 8
                if c.kind == "mfma":
                    if pv & (c.A | c.B): req = max(req, big)
                    if pv & c.C and not (pv == c.C and p.passes == c.passes): req = max(req, big - 2)
                    if pv & c.dst and not (pv == c.dst and pv == c.C) and not (pv & c.C): req = max(req, big - 2)
                elif c.kind in ("valu", "vm", "ds"):
                    if pv & (cv_src | cv_dst): req = max(req, big)
                    if c.kind == "valu" and vg(p.C) & cv_dst: req = max(req, 7 if p.passes == 8 else 3)
            if p.kind == "salu" and ("s", "m0") in p.dst and c.ldsdma: req = max(req, 1)
            if p.stdata and p.stdata & cv_dst and c.kind in ("valu", "mfma"): req = max(req, 2)
            if req - dist > need: need = req - dist
            dist += p.states
            if dist >= 20: break
        return need
    def __call__(self, x, tag=None):
        if isinstance(x, (list, tuple)):
            for y in x: self(y)
            return
        if isinstance(x, WaitVM): self.wait_tags(vm=x.tags); return
        if isinstance(x, WaitLG): self.wait_tags(lg=x.tags); return
        if callable(x): x(self); return
        if isinstance(x, str):
            if "\n" in x:
                for y in x.split("\n"):
                    if y.strip(): self(y.strip())
                return
            x = I(x, tag)
        c = x
        if c.op == "s_waitcnt": self.forcewait(c.text); return
        touch = c.src | c.dst
        vmn = self._need(self.vm, lambda p: p.dst & touch)
        lgn = self._need(self.lg, lambda p: p.dst & touch)
        self._wait(vmn, lgn)
        n = self.hazard(c)
        while n > 0:
            k = min(n, 16); self._push(I(f"s_nop {k-1}")); self.nnop += k; n -= k
        self._push(c)
        if c.kind == "vm":
            self.vm.append(c)
            assert len(self.vm) <= 63, "too many outstanding VMEM ops for vmcnt"
        if c.kind in ("ds", "smem"): self.lg.append(c)
    def state(self):
        return ([(sorted(x.dst), x.tag) for x in self.vm], [(sorted(x.dst), x.tag) for x in self.lg])
    def text(self): return "\n".join(self.out) + "\n"

def cost(x):
    if isinstance(x, (WaitVM, WaitLG)): return 1
    if callable(x): return 1
    i = x if isinstance(x, I) else I(x)
    return 2 if i.trans else 1

def weave(P, backbone, streams, slots):
    pos = [0] * len(streams)
    for i, b in enumerate(backbone):
        for k, st in enumerate(streams):
            last = -1
            for j in range(pos[k], len(st)):
                if st[j][1] is not None and st[j][1] <= i: last = j
            while pos[k] <= last:
                P(st[pos[k]][2]); pos[k] += 1
        P(b)
        left = slots(i) if callable(slots) else slots
        progress = True
        while left > 0 and progress:
            progress = False
            for k, st in enumerate(streams):
                if pos[k] < len(st) and st[pos[k]][0] <= i:
                    x = st[pos[k]][2]
                    P(x); left -= cost(x); pos[k] += 1; progress = True
                    break
    return [st[pos[k]:] for k, st in enumerate(streams)]
def flush(P, streams):
    for st in streams:
        for it in st: P(it[2])
```

```python
from gen_common import *
sGA, sPP = 32, 33
sKR, sVR, sWR, sHR = 36, 40, 44, 48
sT0, sT1, sT2, sT3, sT4 = 52, 53, 54, 55, 56
sLB = 57
sS0 = 58
sMSK = 59
AUX_WREG = 36864
YX = 147456

def prep_issue(P):
    srd(P, sKR, sK, S_*D_*2); srd(P, sVR, sV, S_*D_*2); srd(P, sWR, sWS, 0x1000000); srd(P, sHR, sSK, S_*D_*2)
    P(f"s_mul_i32 s{sLB}, s{sW}, {AUX_WREG}")
    P(f"s_lshl_b32 s{sS0}, s{sPP}, 7"); P(f"s_lshl_b32 s{sT0}, s{sW}, 5"); P(f"s_add_u32 s{sS0}, s{sS0}, s{sT0}")
    P("v_lshrrev_b32 v1, 3, v0"); P("v_and_b32 v2, 7, v0"); P("v_bfe_u32 v3, v0, 4, 1"); P("v_xor_b32 v2, v2, v3")
    P("v_mul_u32_u24 v1, 1280, v1"); P("v_lshl_add_u32 v10, v2, 4, v1")
    for j in range(1, 4): P(f"v_xor_b32 v{10+j}, {j<<5}, v10")
    P(f"s_mul_i32 s{sT1}, s{sS0}, 1280"); P(f"s_lshl_b32 s{sT2}, s{sGA}, 7")
    P(f"s_sub_u32 s{sT3}, s{sT1}, {8*1280}"); P(f"v_add_u32 v14, s{sT3}, v10")
    P(f"s_add_u32 s{sT1}, s{sT1}, s{sT2}")
    for i in range(4):
        for j in range(5):
            P(f"s_add_u32 m0, s{sLB}, {i*9216 + j*1024}")
            if i == 0 and j == 0:
                P(f"buffer_load_dwordx4 v14, s[{sKR}:{sKR+3}], s{sT2} offen lds", tag=("kv", i))
            else:
                P(f"s_add_u32 s{sT3}, s{sT1}, {(512*i + 8*j - 8)*1280}")
                P(f"buffer_load_dwordx4 v{10+(j&3)}, s[{sKR}:{sKR+3}], s{sT3} offen lds", tag=("kv", i))
        for j in range(4):
            P(f"s_add_u32 m0, s{sLB}, {i*9216 + 5120 + j*1024}")
            P(f"s_add_u32 s{sT3}, s{sT1}, {(512*i + 8*j)*1280}")
            P(f"buffer_load_dwordx4 v{10+j}, s[{sVR}:{sVR+3}], s{sT3} offen lds", tag=("kv", i))
        if i == 0:
            P("v_lshrrev_b32 v1, 4, v0"); P("v_and_b32 v2, 3, v0"); P("v_lshl_add_u32 v1, v1, 2, v2"); P("v_lshlrev_b32 v1, 3, v1")
            P(f"s_lshl_b32 s{sT3}, s{sGA}, 9"); P(f"v_add_u32 v1, s{sT3}, v1")
            for it in range(4):
                P(f"global_load_dwordx2 v[{56+2*it}:{57+2*it}], v1, s[{sSH}:{sSH+1}] offset:{128*it}")

KO = [-4, 0, 4, -3, 1, 5]
def prep_addrs(P):
    P("v_and_b32 v1, 3, v0"); P("v_bfe_u32 v2, v0, 2, 2"); P("v_lshl_add_u32 v1, v1, 3, v2")
    P("v_lshrrev_b32 v3, 5, v0")
    P("v_bfe_u32 v4, v0, 4, 1"); P("v_lshlrev_b32 v4, 3, v4"); P(f"v_add_u32 v4, s{sLB}, v4")
    for n, o in enumerate([8 + x for x in KO] + [0, 4]):
        d = 16 + 4*n
        P(f"v_add_u32 v5, {o}, v1")
        P("v_bfe_u32 v6, v5, 3, 2"); P("v_bfe_u32 v7, v5, 1, 1"); P("v_lshl_add_u32 v6, v6, 1, v7")
        P("v_xor_b32 v6, v6, v3"); P("v_lshlrev_b32 v6, 4, v6"); P("v_lshl_add_u32 v6, v5, 7, v6")
        if n >= 6: P("v_add_u32 v6, 5120, v6")
        for it in range(4):
            if it: P(f"v_xor_b32 v7, {it<<5}, v6"); P(f"v_add_u32 v{d+it}, v7, v4")
            else: P(f"v_add_u32 v{d}, v6, v4")
    P("v_lshrrev_b32 v1, 4, v0"); P("v_and_b32 v2, 15, v0"); P("v_lshlrev_b32 v1, 14, v1"); P("v_lshl_add_u32 v120, v2, 4, v1")
    P(f"s_mov_b32 s{sMSK}, 0xffff0000")
    for it in range(4):
        P(f"v_alignbit_b32 v{48+it}, v{56+2*it}, v{56+2*it}, 16")
        P(f"v_alignbit_b32 v{52+it}, v{57+2*it}, v{57+2*it}, 16")
    P(f"s_lshl_b32 s{sT0}, s{sGA}, 18"); P(f"s_lshl_b32 s{sT1}, s{sS0}, 3"); P(f"s_add_u32 s{sT4}, s{sT0}, s{sT1}")

def prep_reads(i, it):
    b = 64 + 16*(it & 1)
    return [f"ds_read_b64_tr_b16 v[{b+2*n}:{b+2*n+1}], v{16+4*n+it} offset:{i*9216}" for n in range(8)]

def prep_round(P, i, sc="sc1", after=None):
    P(WaitVM([("kv", i)]))
    P(prep_reads(i, 0))
    for it in range(4):
        if it < 3: P(prep_reads(i, it+1))
        b = 64 + 16*(it & 1)
        Pj = lambda j: b + 2 + j
        Sj = lambda j: b + 6 + 1 + j
        for j in range(4):
            P(f"v_dot2_f32_bf16 v{96+2*j}, v{Sj(j-1)}, v{52+it}, 0")
            P(f"v_dot2_f32_bf16 v{97+2*j}, v{Pj(j-1)}, v{52+it}, 0")
        for j in range(4):
            P(f"v_dot2_f32_bf16 v{96+2*j}, v{Sj(j)}, v{48+it}, v{96+2*j}")
            P(f"v_dot2_f32_bf16 v{97+2*j}, v{Pj(j)}, v{48+it}, v{97+2*j}")
        for j in range(4):
            P(f"v_lshlrev_b32 v{104+2*j}, 16, v{b+12+j}")
            P(f"v_and_b32 v{105+2*j}, s{sMSK}, v{b+12+j}")
        for j in range(4):
            P(f"v_pk_mul_f32 v[{96+2*j}:{97+2*j}], v[{96+2*j}:{97+2*j}], v[{104+2*j}:{105+2*j}]")
        o = 112 + 4*(it & 1)
        for j in range(4):
            P(f"v_cvt_pk_bf16_f32 v{o+j}, v{96+2*j}, v{97+2*j}")
        P(f"s_add_u32 s{sT3}, s{sT4}, {WS_KVT + it*4*16384 + i*512*8}")
        P(f"buffer_store_dwordx4 v[{o}:{o+3}], v120, s[{sWR}:{sWR+3}], s{sT3} offen {sc}", tag=("kvst", i))

BB = 126
def conv_setup(P):
    P("v_and_b32 v1, 3, v0"); P("v_bfe_u32 v2, v0, 2, 2"); P("v_lshrrev_b32 v3, 4, v0")
    P("v_add_u32 v4, v1, v3"); P("v_lshlrev_b32 v4, 5, v4"); P("v_lshl_add_u32 v4, v2, 3, v4"); P(f"v_add_u32 v121, s{sLB}, v4")
    P("v_sub_u32 v4, v1, v2"); P("v_lshlrev_b32 v4, 3, v4"); P("v_lshlrev_b32 v5, 5, v3"); P("v_sub_u32 v4, v4, v5")
    P("v_add_u32 v4, 96, v4"); P(f"v_add_u32 v122, s{sLB}, v4")
    P(f"s_lshl_b32 s{sT0}, s{sW}, 1"); P(f"s_add_u32 s{sT0}, s{sT0}, {YX}"); P("v_lshlrev_b32 v4, 3, v0"); P(f"v_add_u32 v123, s{sT0}, v4")
    P(f"s_lshl_b32 s{sT0}, s{sW}, 12"); P("v_lshlrev_b32 v4, 4, v0"); P(f"v_add_u32 v124, s{sT0}, v4")
    P(f"s_lshl_b32 s{sT0}, s{sW}, 4"); P("v_lshlrev_b32 v5, 6, v0"); P(f"v_add_u32 v125, s{sT0}, v5")
    P(f"v_add_u32 v126, s{sLB}, v4")
    P(f"v_accvgpr_write_b32 a{BB+2}, 0"); P(f"v_accvgpr_write_b32 a{BB+3}, 0")

def conv_body(P, hoff, xoff, extra=()):
    gs = [0]
    for T in range(32): gs.append(gs[-1] + T//2 + 1)
    bb = []
    for T in range(32):
        acc = v(128 + 4*T, 4)
        for n, q in enumerate(range(T//2, -1, -1)):
            u = T - 2*q
            bb.append(f"v_mfma_f32_16x16x32_bf16 {acc}, {a(4*q, 4)}, {a(BB - 2*u, 4)}, {acc if n else 0}")
    rd = []
    for T in range(32):
        if T % 2 == 0:
            for z in range(2): rd.append((T, f"ds_read_b64_tr_b16 {a(2*(T+z), 2)}, v121 offset:{hoff + 128*(T+z)}"))
        rd.append((T, f"ds_read_b64_tr_b16 {a(BB - 2*T, 2)}, v122 offset:{xoff + 128*T}"))
    for (T, x) in rd[:14]: P(x)
    reads = [(max(0, gs[T] - 24), max(0, gs[T] - 6), x) for (T, x) in rd[14:]]
    dp = "row_mask:0xf bank_mask:0xf"
    comb = []
    for T in range(32):
        D = lambda r, TT=T: 128 + 4*TT + r
        t2 = 96 + 2*(T & 3); t1 = t2 + 1; y = 104 + (T & 3)
        p2 = 96 + 2*((T-1) & 3); p1 = p2 + 1
        e = gs[T+1] + 2
        misc = []
        if T >= 2 and T % 2 == 0:
            yo = 112 + ((T//2) & 3)
            misc = [f"v_cvt_pk_bf16_f32 v{yo}, v{104+((T-2)&3)}, v{104+((T-1)&3)}", f"ds_write_b16 v123, v{yo} offset:{512*(T-2)}"]
        elif T >= 3:
            yo = 112 + (((T-1)//2) & 3)
            misc = [f"ds_write_b16_d16_hi v123, v{yo} offset:{512*(T-2)}"]
        if T == 0:
            ops = [f"v_add_f32_dpp v{t2}, v{D(3)}, v{D(2)} wave_shr:1 {dp} bound_ctrl:0",
                   f"v_add_f32_dpp v{t1}, v{t2}, v{D(1)} wave_shr:1 {dp} bound_ctrl:0",
                   f"v_add_f32_dpp v{y}, v{t1}, v{D(0)} wave_shr:1 {dp} bound_ctrl:0"]
        else:
            ops = [f"v_add_f32_dpp v{t2}, v{D(3)-4}, v{D(2)} wave_ror:1 {dp}",
                   f"v_add_f32_dpp v{t1}, v{p2}, v{D(1)} wave_ror:1 {dp}",
                   f"v_add_f32_dpp v{t2}, v{D(3)}, v{D(2)} wave_shr:1 {dp}",
                   f"v_add_f32_dpp v{y}, v{p1}, v{D(0)} wave_ror:1 {dp}",
                   f"v_add_f32_dpp v{t1}, v{t2}, v{D(1)} wave_shr:1 {dp}"] + misc[:1] + \
                  [f"v_add_f32_dpp v{y}, v{t1}, v{D(0)} wave_shr:1 {dp}"] + misc[1:]
        comb += [(e, None, x) for x in ops]
    comb += [(999, None, x) for x in [f"v_cvt_pk_bf16_f32 v112, v{104+(30&3)}, v{104+(31&3)}",
             f"ds_write_b16 v123, v112 offset:{512*30}", f"ds_write_b16_d16_hi v123, v112 offset:{512*31}"]]
    left = weave(P, bb, [reads, comb, list(extra)], 2)
    flush(P, left)

def conv_out(P, sQoff, sc="sc1"):
    P.waitall(vm=False); P("s_barrier")
    P(f"v_add_u32 v1, {YX}, v124")
    for i in range(4): P(f"ds_read_b128 v[{64+4*i}:{67+4*i}], v1 offset:{1024*i}")
    for i in range(4): P(f"buffer_store_dwordx4 v[{64+4*i}:{67+4*i}], v124, s[{sWR}:{sWR+3}], s{sQoff} offen offset:{1024*i} {sc}", tag="yst")
```

```python
from emit import *
S_, D_, F_ = 2048, 640, 1728
WS_KVT = 0
WS_YQ  = 0x280000
WS_HF  = 0x500000
WS_ST  = 0xC00000
WS_FL  = 0xC10000
sX, sK, sV, sSH, sSK, sSD, sBX, sWG, sWU, sWD, sOUT, sDBG, sWS = 4, 6, 8, 10, 12, 14, 16, 18, 20, 22, 24, 26, 28
sW = 30
LOG2E = 1.4426950408889634
import struct
def f2u(x): return struct.unpack("<I", struct.pack("<f", x))[0]

def header(P, name):
    P.raw(f".globl {name}\n.p2align 8\n.type {name},@function\n{name}:")
def load_args(P):
    P("s_load_dwordx16 s[4:19], s[0:1], 0")
    P("s_load_dwordx8 s[20:27], s[0:1], 64")
    P("s_load_dwordx2 s[28:29], s[0:1], 96")
def wave_id(P):
    P("v_lshrrev_b32 v1, 6, v0"); P(f"v_readfirstlane_b32 s{sW}, v1"); P("v_and_b32 v0, 63, v0")
def srd(P, d, base, nbytes, bias=0):
    if bias:
        P(f"s_sub_u32 s{d}, s{base}, {bias}"); P(f"s_subb_u32 s{d+1}, s{base+1}, 0")
    else:
        P(f"s_mov_b32 s{d}, s{base}"); P(f"s_mov_b32 s{d+1}, s{base+1}")
    P(f"s_mov_b32 s{d+2}, {nbytes + bias}"); P(f"s_mov_b32 s{d+3}, 0x20000")
def ptr_add(P, d, base, off):
    P(f"s_add_u32 s{d}, s{base}, {off}"); P(f"s_addc_u32 s{d+1}, s{base+1}, 0")
def descriptor(name, vg=512, acc=256):
    return (f".amdhsa_kernel {name}\n  .amdhsa_next_free_vgpr {vg}\n  .amdhsa_next_free_sgpr 102\n  .amdhsa_accum_offset {acc}\n"
            "  .amdhsa_group_segment_fixed_size 0\n  .amdhsa_kernarg_size 104\n  .amdhsa_user_sgpr_count 2\n"
            "  .amdhsa_user_sgpr_kernarg_segment_ptr 1\n  .amdhsa_system_sgpr_workgroup_id_x 1\n"
            "  .amdhsa_float_denorm_mode_32 3\n.end_amdhsa_kernel\n")
```

```python
from gen_common import *
sRB, sCB = 32, 33
sXR, sGR, sWR, sUR = 36, 40, 44, 48
sT0, sT1, sT2, sT3, sT4 = 52, 53, 54, 55, 56
sM0B = 57
sHS = 58
sNL2E = 59
SLOT = 32768
M32 = "v_mfma_f32_32x32x16_bf16"
M16 = "v_mfma_f32_16x16x32_bf16"

def stats_issue(P, base=96):
    P(f"s_lshl_b32 s{sT0}, s{sRB}, 8"); P(f"s_lshl_b32 s{sT1}, s{sCB}, 4"); P(f"s_add_u32 s{sT0}, s{sT0}, s{sT1}")
    P(f"s_lshl_b32 s{sT1}, s{sW}, 2"); P(f"s_add_u32 s{sT0}, s{sT0}, s{sT1}")
    P("v_lshrrev_b32 v1, 4, v0"); P(f"v_add_u32 v9, s{sT0}, v1")
    P("v_mul_u32_u24 v1, 1280, v9"); P("v_and_b32 v2, 15, v0"); P("v_lshl_add_u32 v1, v2, 4, v1")
    for i in range(5):
        P(f"global_load_dwordx4 v[{base+4*i}:{base+4*i+3}], v1, s[{sX}:{sX+1}] offset:{256*i}", tag="stx")

def rnd_bf16(P, r, tmp=None):
    P(f"v_cvt_pk_bf16_f32 v{r}, v{r}, v{r}"); P(f"v_lshlrev_b32 v{r}, 16, v{r}")

def stats_compute(P, base=96, t=128, sc="sc1"):
    dp = "row_mask:0xf bank_mask:0xf"
    P("v_mov_b32 v2, 0x3f803f80")
    for i in range(20):
        P(f"v_dot2_f32_bf16 v{4+(i&1)}, v{base+i}, v2, {0 if i < 2 else v(4+(i&1))}")
    P("s_mov_b32 s60, 0xffff0000")
    for i in range(20):
        P(f"v_lshlrev_b32 v{t+2*i}, 16, v{base+i}"); P(f"v_and_b32 v{t+2*i+1}, s60, v{base+i}")
    P("v_add_f32 v4, v4, v5")
    for r in (8, 4, 2, 1):
        P(f"v_add_f32_dpp v4, v4, v4 row_ror:{r} {dp}")
    P(f"v_mul_f32 v4, {hex(f2u(-1.0/640))}, v4")
    P("v_mov_b32 v5, v4")
    for i in range(20):
        P(f"v_pk_add_f32 v[{t+2*i}:{t+2*i+1}], v[{t+2*i}:{t+2*i+1}], v[4:5]")
    for i in range(20):
        d = t + 40 + 2*(i & 1)
        if i < 2: P(f"v_pk_mul_f32 v[{d}:{d+1}], v[{t+2*i}:{t+2*i+1}], v[{t+2*i}:{t+2*i+1}]")
        else: P(f"v_pk_fma_f32 v[{d}:{d+1}], v[{t+2*i}:{t+2*i+1}], v[{t+2*i}:{t+2*i+1}], v[{d}:{d+1}]")
    P(f"v_pk_add_f32 v[{t+40}:{t+41}], v[{t+40}:{t+41}], v[{t+42}:{t+43}]")
    P(f"v_add_f32 v6, v{t+40}, v{t+41}")
    for r in (8, 4, 2, 1):
        P(f"v_add_f32_dpp v6, v6, v6 row_ror:{r} {dp}")
    P(f"v_mul_f32 v6, {hex(f2u(1.0/640))}, v6")
    rnd_bf16(P, 6)
    P(f"v_add_f32 v6, {hex(f2u(1e-5))}, v6")
    rnd_bf16(P, 6)
    P("v_sqrt_f32 v6, v6")
    rnd_bf16(P, 6)
    P("v_rcp_f32 v5, v6")
    P("v_cvt_pk_bf16_f32 v4, v4, v4")
    P("v_lshlrev_b32 v9, 3, v9")
    P("s_mov_b32 s60, 0x00010001"); P("s_mov_b32 s61, 0x00010001"); P("s_mov_b64 exec, s[60:61]")
    P(f"s_mov_b32 s60, {WS_ST}")
    P(f"buffer_store_dwordx2 v[4:5], v9, s[{sWR}:{sWR+3}], s60 offen {sc}", tag="stst")
    P("s_mov_b64 exec, -1")

def g1_srds(P):
    srd(P, sXR, sX, S_*D_*2, 3072); srd(P, sGR, sWG, D_*F_*2, 3072); srd(P, sUR, sWU, D_*F_*2, 3072); srd(P, sWR, sWS, 0x1000000)

def g1_dma_setup(P):
    P(f"s_lshl_b32 s{sM0B}, s{sW}, 13")
    P("v_lshrrev_b32 v1, 3, v0"); P("v_and_b32 v2, 7, v0")
    P("v_bfe_u32 v3, v0, 4, 1"); P("v_lshlrev_b32 v3, 1, v3"); P("v_xor_b32 v3, v3, v2"); P("v_lshlrev_b32 v3, 4, v3")
    P("v_mul_u32_u24 v4, 3456, v1")
    P(f"s_mul_i32 s{sT0}, s{sW}, {16*3456}"); P(f"s_lshl_b32 s{sT1}, s{sCB}, 7"); P(f"s_add_u32 s{sT0}, s{sT0}, s{sT1}")
    P(f"v_add_u32 v4, s{sT0}, v4")
    P("v_xor_b32 v5, 64, v3")
    P("v_add_u32 v3, v3, v4"); P("v_add_u32 v5, v5, v4")
    P("v_add_u32 v10, 3072, v3"); P(f"v_add_u32 v11, {8*3456 + 2048}, v3")
    P("v_add_u32 v12, 1024, v5"); P(f"v_add_u32 v13, {8*3456}, v5")
    P("v_lshrrev_b32 v3, 4, v0"); P("v_xor_b32 v3, v3, v2"); P("v_lshlrev_b32 v3, 4, v3")
    P("v_mul_u32_u24 v4, 1280, v1"); P("v_add_u32 v3, v3, v4"); P("v_xor_b32 v5, 64, v3")
    P(f"s_mul_i32 s{sT0}, s{sRB}, {256*1280}"); P(f"s_mul_i32 s{sT1}, s{sW}, {32*1280}"); P(f"s_add_u32 s{sT1}, s{sT1}, s{sT0}")
    for b in range(4):
        P(f"s_add_u32 s{sT2}, s{sT1}, {8*b*1280 + 3072 - 1024*b}"); P(f"v_add_u32 v{14+b}, s{sT2}, v{5 if b & 1 else 3}")
    P(f"s_and_b32 s{sT2}, s{sW}, 1"); P(f"s_lshl_b32 s{sT2}, s{sT2}, 6"); P(f"v_xor_b32 v3, s{sT2}, v3")
    P(f"s_mul_i32 s{sT1}, s{sW}, {8*1280}"); P(f"s_add_u32 s{sT1}, s{sT1}, s{sT0}")
    for i in range(4):
        P(f"s_add_u32 s{sT2}, s{sT1}, {128*i + 3072 - 1024*i}"); P(f"v_add_u32 v{18+i}, s{sT2}, v3")

def dma_chunk(c):
    sl = (c % 5) * SLOT; tg = ("ch", c)
    L = [f"s_add_u32 m0, s{sM0B}, {sl}", f"s_mov_b32 s{sT3}, {c*64*3456}"]
    for i in range(4):
        r = sGR if i < 2 else sUR
        L.append(I(f"buffer_load_dwordx4 v{10+i}, s[{r}:{r+3}], s{sT3} offen offset:{1024*i} lds", tg))
    L += [f"s_add_u32 m0, s{sM0B}, {sl + 4096}", f"s_movk_i32 s{sT4}, {c*128}"]
    for i in range(4):
        L.append(I(f"buffer_load_dwordx4 v{14+i}, s[{sXR}:{sXR+3}], s{sT4} offen offset:{1024*i} lds", tg))
    return L
P1SLOT = {4: 0, 5: 2, 6: 3, 7: 4}
def dma_tile_p1(t):
    sl = P1SLOT[t] * SLOT; tg = ("tl", t); L = []
    for h in range(2):
        L += [f"s_add_u32 m0, s{sM0B}, {sl + 4096*h}", f"s_mov_b32 s{sT3}, {t*32*1280 + 512*h}"]
        for i in range(4):
            L.append(I(f"buffer_load_dwordx4 v{18+i}, s[{sXR}:{sXR+3}], s{sT3} offen offset:{1024*i} lds", tg))
    return L
def dma_tile_p2():
    L = []
    for t in range(4, 8):
        L += [f"s_add_u32 m0, s{sM0B}, {SLOT + 2048*(t-4)}", f"s_mov_b32 s{sT3}, {t*32*1280 + 1024}"]
        for i in range(2):
            L.append(I(f"buffer_load_dwordx4 v{18+i}, s[{sXR}:{sXR+3}], s{sT3} offen offset:{1024*i} lds", "p2"))
    return L

def g1_addr_setup(P):
    P("v_bfe_u32 v1, v0, 4, 1"); P("v_lshrrev_b32 v2, 5, v0"); P("v_bfe_u32 v3, v0, 2, 2"); P("v_and_b32 v4, 3, v0")
    P("v_bfe_u32 v5, v0, 3, 2")
    P(f"v_xor_b32 v5, s{sW}, v5"); P("v_lshlrev_b32 v5, 5, v5"); P("v_lshl_add_u32 v5, v4, 3, v5")
    P("v_lshl_add_u32 v5, v3, 7, v5"); P("v_lshl_add_u32 v5, v2, 10, v5"); P("v_lshl_add_u32 v22, v1, 11, v5")
    P("v_add_u32 v23, 0x10000, v22"); P("v_add_u32 v24, 0x20000, v22")
    P("v_and_b32 v1, 31, v0"); P("v_bfe_u32 v3, v0, 1, 3"); P("v_xor_b32 v3, v3, v2"); P("v_lshlrev_b32 v3, 4, v3")
    P("v_lshl_add_u32 v4, v1, 7, v3"); P("v_add_u32 v4, 4096, v4")
    for ks in range(4):
        if ks: P(f"v_xor_b32 v{25+ks}, {ks<<5}, v4")
        else: P("v_mov_b32 v25, v4")
        P(f"v_add_u32 v{29+ks}, 0x10000, v{25+ks}"); P(f"v_add_u32 v{33+ks}, 0x20000, v{25+ks}")
    P("v_bfe_u32 v4, v0, 3, 2"); P("v_and_b32 v5, 7, v0"); P("v_lshl_add_u32 v3, v5, 7, v3"); P("v_lshl_add_u32 v37, v4, 13, v3")
    for ks in range(1, 4): P(f"v_xor_b32 v{37+ks}, {ks<<5}, v37")
    P("v_bfe_u32 v4, v0, 4, 1"); P(f"v_mul_u32_u24 v4, {54*1024}, v4"); P("v_and_b32 v5, 15, v0"); P("v_lshl_add_u32 v4, v5, 4, v4")
    P("v_lshl_add_u32 v4, v2, 8, v4"); P(f"s_and_b32 s{sT0}, s{sW}, 1"); P(f"s_lshl_b32 s{sT0}, s{sT0}, 9"); P(f"v_add_u32 v41, s{sT0}, v4")
    P(f"s_mul_i32 s{sT0}, s{sRB}, {16*54}"); P(f"s_lshl_b32 s{sT1}, s{sCB}, 1"); P(f"s_add_u32 s{sT0}, s{sT0}, s{sT1}")
    P(f"s_lshr_b32 s{sT1}, s{sW}, 1"); P(f"s_add_u32 s{sT0}, s{sT0}, s{sT1}"); P(f"s_lshl_b32 s{sT0}, s{sT0}, 10"); P(f"s_add_u32 s{sHS}, s{sT0}, {WS_HF}")
    P(f"s_lshl_b32 s{sT0}, s{sRB}, 11"); P(f"s_add_u32 s{sT0}, s{sT0}, {WS_ST}"); P("v_lshlrev_b32 v4, 3, v1"); P(f"v_add_u32 v42, s{sT0}, v4")
    P("v_bfe_u32 v4, v0, 2, 2"); P("v_bfe_u32 v5, v0, 4, 1"); P("v_cmp_eq_u32 vcc, v4, v5"); P("v_mov_b32 v4, 0x3f803f80")
    P("v_cndmask_b32 v44, 0, v4, vcc")
    for r in (45, 46, 47): P(f"v_mov_b32 v{r}, v44")
    for r in (53, 54, 55, 57, 58, 59): P(f"v_mov_b32 v{r}, 0")
    P(f"s_mov_b32 s{sNL2E}, {hex(f2u(-LOG2E))}")

def readsA(g):
    c, ks = g >> 2, g & 3
    sl = (c % 5) * SLOT; win = sl >> 16; so = sl & 0xffff
    L = [f"ds_read_b64_tr_b16 {a(4*g + 2*z, 2)}, v{22+win} offset:{so + ks*8192 + 512*z}" for z in range(2)]
    for t in range(4):
        b = 96 + 16*(g & 1) + 4*t
        L.append(f"ds_read_b128 {v(b, 4)}, v{25 + 4*win + ks} offset:{so + t*8192}")
    return L
def readB(t, ks, idx, win):
    j = ks >> 2
    off = P1SLOT[t]*SLOT + j*1024 if j < 8 else SLOT + (2*(t-4) + j - 8)*1024
    return off, 96 + 4*(idx & 7)

def stats_loads(sc="sc1"):
    return [f"buffer_load_dwordx2 v[{60+2*t}:{61+2*t}], v42, s[{sWR}:{sWR+3}], 0 offen offset:{256*t} {sc}" for t in range(8)]

def accof(t): return 128 + 16*t if t < 4 else 192 + 16*(t & 1)
def epilogue(t, sc="sc1"):
    d = accof(t); o = 84 + 4*(t & 1); c1 = 61 + 2*t
    L = [f"v_mul_f32 v{c1}, s{sNL2E}, v{c1}"]
    for h in range(2):
        js = range(4*h, 4*h + 4)
        L += [f"v_mul_f32 v{76+j}, v{d+j}, v{c1}" for j in js]
        L += [f"v_exp_f32 v{76+j}, v{76+j}" for j in js]
        L += [f"v_mul_f32 v{d+8+j}, v{d+j}, v{d+8+j}" for j in js]
        L += [f"v_add_f32 v{76+j}, 1.0, v{76+j}" for j in js]
        L += [f"v_rcp_f32 v{76+j}, v{76+j}" for j in js]
        if h == 1: L += [f"s_add_u32 s{sT2}, s{sHS}, {2*t*54*1024}"]
        L += [f"v_mul_f32 v{d+8+j}, v{d+8+j}, v{76+j}" for j in js]
        L += [f"v_cvt_pk_bf16_f32 v{o+2*h+i}, v{d+8+4*h+2*i}, v{d+8+4*h+2*i+1}" for i in range(2)]
    L.append(I(f"buffer_store_dwordx4 v[{o}:{o+3}], v41, s[{sWR}:{sWR+3}], s{sT2} offen {sc}", ("hst", t)))
    return L

def g1_main(P, pre_stats=None, sc="sc1"):
    P(WaitVM([("ch", 0)])); P("s_barrier"); P(readsA(0))
    for g in range(40):
        c, ks = g >> 2, g & 3
        fill = []
        P.waitall(vm=False)
        if ks == 3:
            P(WaitVM([("ch", c+1)] if c < 9 else [("tl", 4), "p2"])); P("s_barrier")
        if g < 39: fill += readsA(g+1)
        else:
            for i in range(4):
                off, b = readB(4, i, i, 0)
                fill.append(I(f"ds_read_b128 {v(b, 4)}, v{37 + (i & 3)} offset:{off}", ("xb", i)))
        dm = []
        if ks == 3:
            dm = dma_chunk(c+5) if c < 5 else (dma_tile_p1(4) if c == 5 else dma_tile_p2() if c == 6 else dma_tile_p1(c - 2))
            assert not getattr(g1_main, "pend", [])
            g1_main.pend = dm
        if g == 33 and pre_stats: P(pre_stats)
        if g == 34: g1_main.pend = g1_main.pend + stats_loads(sc)
        bb = []
        for t in range(4):
            acc = v(128 + 16*t, 16)
            bb.append(f"{M32} {acc}, {a(4*g, 4)}, {v(96 + 16*(g & 1) + 4*t, 4)}, {acc if g else 0}")
        bb.append(f"{M16} v[48:51], v[44:47], {a(4*g, 4)}, {'v[48:51]' if g else 0}")
        pend = getattr(g1_main, "pend", [])
        left = weave(P, bb, [[(0, None, x) for x in fill], [(0, None, x) for x in pend]], lambda i: 4 if i < 4 else 1)
        assert not left[0]
        g1_main.pend = [x[2] for x in left[1]]
    pend = g1_main.pend; g1_main.pend = []
    bb = []; reads = []; epi = []; misc = [(0, None, x) for x in pend]
    csfix = ["v_cvt_pk_bf16_f32 v52, v48, v48", "v_lshlrev_b32 v52, 16, v52", "v_sub_f32 v52, v48, v52", "v_cvt_pk_bf16_f32 v52, v48, v52"]
    XPOS = 4
    pos = {}
    for t in range(4, 8):
        acc = v(accof(t), 16)
        for ks in range(40):
            idx = (t-4)*40 + ks
            pos[(t, ks)] = len(bb)
            m = f"{M32} {acc}, {a(4*ks, 4)}, {v(96 + 4*(idx & 7), 4)}, {acc if ks else 0}"
            bb.append([WaitLG([("xb", idx), ("xb", idx + 1)]), m] if idx % 2 == 0 else m)
            if t == 4 and XPOS <= ks < XPOS + 4:
                tt = ks - XPOS; pos[("x", tt)] = len(bb)
                bb.append(f"{M32} {v(accof(tt), 16)}, v[52:55], v[56:59], {v(accof(tt), 16)}")
        pos[("x", t)] = len(bb)
        bb.append(f"{M32} {acc}, v[52:55], v[56:59], {acc}")
    hi = [False]
    for t in range(4, 8):
        for ks in range(40):
            idx = (t-4)*40 + ks
            if idx < 4: continue
            off, b = readB(t, ks, idx, 0)
            pt, pk = divmod(max(idx - 6, 0), 40); e = pos[(pt + 4, pk)]
            pre = []
            if ks == 0: pre = [WaitVM([("tl", t)]), "s_barrier"]
            win = off >> 16
            areg = {0: 37, 1: 29, 2: 33}[win] + (ks & 3)
            reads += [(e, e + 1, x) for x in pre] + [(e, e + 1, I(f"ds_read_b128 {v(b, 4)}, v{areg} offset:{off & 0xffff}", ("xb", idx)))]
    winfix = [f"v_add_u32 v{29+i}, 0x10000, v{37+i}" for i in range(4)] + [f"v_add_u32 v{33+i}, 0x20000, v{37+i}" for i in range(4)]
    ctl = [(1, pos[("x", 0)] - 1, x) for x in csfix]
    for t in range(8):
        px = pos[("x", t)]
        ctl.append((px - 2 if t not in (1, 2, 3) else px - 2, px - 1 if t not in (1, 2, 3) else px, f"v_mov_b32 v56, v{60+2*t}"))
        if t == 3: ctl += [(px, px + 20, x) for x in winfix]
    order = [0, 1, 2, 4, 3, 5, 6, 7]
    for t in order:
        e = pos[("x", t)] + 3
        dl = pos[(t + 2, 0)] if t in (4, 5) else None
        epi += [(e, dl, x) for x in epilogue(t, sc)]
    left = weave(P, bb, [reads, ctl, misc, epi], 5)
    flush(P, left)
```

```python
from gen_common import *
sRB2, sP2, sCB2 = 62, 63, 64
sDR, sWR, sXR2, sOR = 68, 44, 72, 76
sT0, sT1, sT2, sT3, sT4 = 52, 53, 54, 55, 56
sKS0, sHB, sM0W, sMSK = 65, 66, 67, 60
M16 = "v_mfma_f32_16x16x32_bf16"
XST = 0
RED = 16384
def hreg(n, j):
    k = (n % 3)*14 + j
    return 256 + 224 + 4*k if k < 8 else 120 + 4*(k - 8)
ACC = 88
PR = 40
XN = 72
def rowtile(n):
    u, h = n >> 1, n & 1
    return [0, 2, 8, 10][u] + h

def g2_setup(P):
    srd(P, sDR, sWD, F_*D_*2, 3072); srd(P, sWR, sWS, 0x1000000); srd(P, sXR2, sX, S_*D_*2); srd(P, sOR, sOUT, S_*D_*2)
    P(f"s_mov_b32 s{sMSK}, 0xffff0000")
    P(f"s_mul_i32 s{sKS0}, s{sW}, 13"); P(f"s_min_u32 s{sT0}, s{sW}, 1"); P(f"s_add_u32 s{sKS0}, s{sKS0}, s{sT0}")
    P("v_lshrrev_b32 v1, 3, v0"); P("v_and_b32 v2, 7, v0"); P("v_lshrrev_b32 v3, 4, v0"); P("v_lshlrev_b32 v4, 1, v3"); P("v_xor_b32 v4, v4, v2")
    P("v_mul_u32_u24 v5, 1280, v1"); P("v_lshl_add_u32 v4, v4, 4, v5")
    P(f"s_mul_i32 s{sT0}, s{sKS0}, {32*1280}"); P(f"s_lshl_b32 s{sT1}, s{sCB2}, 7"); P(f"s_add_u32 s{sT0}, s{sT0}, s{sT1}")
    for b in range(4):
        P(f"s_add_u32 s{sT2}, s{sT0}, {8*b*1280 + 3072 - 1024*b}"); P(f"v_add_u32 v{10+b}, s{sT2}, v4")
    P("v_xor_b32 v4, v3, v2"); P("v_lshl_add_u32 v4, v4, 4, v5")
    P(f"s_lshl_b32 s{sT0}, s{sRB2}, 8"); P(f"s_lshl_b32 s{sT2}, s{sP2}, 6"); P(f"s_add_u32 s{sT0}, s{sT0}, s{sT2}")
    P(f"s_and_b32 s{sT2}, s{sW}, 1"); P(f"s_lshl_b32 s{sT2}, s{sT2}, 5"); P(f"s_lshr_b32 s{sT3}, s{sW}, 1"); P(f"s_lshl_b32 s{sT3}, s{sT3}, 7")
    P(f"s_add_u32 s{sT2}, s{sT2}, s{sT3}"); P(f"s_add_u32 s{sT2}, s{sT2}, s{sT0}"); P(f"s_mul_i32 s{sT2}, s{sT2}, 1280"); P(f"s_add_u32 s{sT2}, s{sT2}, s{sT1}")
    P(f"v_add_u32 v24, s{sT2}, v4"); P("v_xor_b32 v4, 64, v4"); P(f"v_add_u32 v28, s{sT2}, v4")
    P("v_lshrrev_b32 v1, 5, v0"); P("v_bfe_u32 v2, v0, 2, 3")
    P("v_lshl_add_u32 v1, v1, 4, v2"); P("v_lshlrev_b32 v1, 7, v1"); P("v_and_b32 v2, 3, v0"); P("v_lshl_add_u32 v1, v2, 3, v1")
    P("v_bfe_u32 v2, v0, 3, 2")
    for i in range(4):
        P(f"s_add_u32 s{sT2}, s{sW}, {1+i}"); P(f"s_and_b32 s{sT2}, s{sT2}, 3")
        P(f"v_xor_b32 v4, s{sT2}, v2"); P(f"v_lshl_add_u32 v{14+i}, v4, 5, v1")
        if i < 3:
            P(f"s_mul_i32 s{sT2}, s{sT2}, 3072"); P(f"s_add_u32 s{sT2}, s{sT2}, {RED + 1024*i}"); P("v_lshlrev_b32 v4, 4, v0"); P(f"v_add_u32 v{19+i}, s{sT2}, v4")
    P("v_lshlrev_b32 v18, 4, v0")
    P(f"s_mul_i32 s{sT2}, s{sW}, 3072"); P(f"s_add_u32 s{sT2}, s{sT2}, {RED}"); P(f"v_add_u32 v22, s{sT2}, v18")
    P(f"s_lshl_b32 s{sT2}, s{sW}, 12"); P(f"s_add_u32 s{sT2}, s{sT2}, {XST}"); P(f"v_add_u32 v27, s{sT2}, v18")
    P(f"s_lshr_b32 s{sT2}, s{sT0}, 4"); P(f"s_mul_i32 s{sT2}, s{sT2}, 54"); P(f"s_add_u32 s{sT2}, s{sT2}, s{sKS0}"); P(f"s_lshl_b32 s{sT2}, s{sT2}, 10")
    P(f"s_add_u32 s{sHB}, s{sT2}, {WS_HF}")
    P("v_and_b32 v1, 15, v0"); P("v_lshrrev_b32 v2, 5, v0"); P(f"s_lshl_b32 s{sT2}, s{sW}, 1"); P(f"v_add_u32 v2, s{sT2}, v2")
    P("v_bfe_u32 v4, v0, 1, 3"); P("v_xor_b32 v2, v2, v4"); P("v_lshlrev_b32 v2, 4, v2"); P("v_lshl_add_u32 v2, v1, 7, v2")
    P("v_bfe_u32 v4, v0, 4, 1"); P("v_lshl_add_u32 v23, v4, 3, v2")
    if XST: P(f"v_add_u32 v23, {XST}, v23")
    P(f"v_add_u32 v1, s{sT0}, v1"); P("v_lshlrev_b32 v1, 3, v1"); P(f"v_add_u32 v25, {WS_ST}, v1")
    P(f"s_lshl_b32 s{sT2}, s{sCB2}, 2"); P(f"s_add_u32 s{sT2}, s{sT2}, s{sW}"); P(f"s_lshl_b32 s{sT2}, s{sT2}, 16"); P(f"s_add_u32 s{sT2}, s{sT2}, {WS_YQ}")
    P("v_lshrrev_b32 v2, 4, v0"); P("v_lshl_add_u32 v1, v2, 14, v1"); P(f"v_add_u32 v26, s{sT2}, v1")

def wd_dma(j, lds):
    L = [f"s_add_u32 m0, s{sM0W}, {lds}", f"s_mov_b32 s{sT3}, {j*32*1280}"]
    for b in range(4):
        L.append(I(f"buffer_load_dwordx4 v{10+b}, s[{sDR}:{sDR+3}], s{sT3} offen offset:{1024*b} lds", ("wd", j)))
    return L
def wd_reads(j, lds, areg=14):
    return [f"ds_read_b64_tr_b16 {a(16*j + 4*i + 2*z, 2)}, v{areg+i} offset:{lds + 1024*z}" for i in range(4) for z in range(2)]
def h_loads(n, sc="sc1"):
    L = []
    for j in range(14):
        if j % 4 == 0: L.append(f"s_add_u32 s{sT4}, s{sHB}, {(rowtile(n)*54 + j)*1024}")
        L.append(I(f"buffer_load_dwordx4 {R(hreg(n, j), 4)}, v18, s[{sWR}:{sWR+3}], s{sT4} offen offset:{1024*(j % 4)} {sc}", ("h", n)))
    return L
def x_dma():
    L = []
    for b in range(4):
        L += [f"s_lshl_b32 s{sT3}, s{sW}, 12", f"s_add_u32 m0, s{sT3}, {XST + 1024*b}", f"s_movk_i32 s{sT3}, {8*b*1280}",
              I(f"buffer_load_dwordx4 v{28 if b & 1 else 24}, s[{sXR2}:{sXR2+3}], s{sT3} offen lds", "xd")]
    return L
def st_load(n, sc="sc1"):
    return f"buffer_load_dwordx2 v[{XN+2*n}:{XN+2*n+1}], v25, s[{sWR}:{sWR+3}], 0 offen offset:{128*rowtile(n)} {sc}"
def y_load(n, sc="sc1"):
    return I(f"buffer_load_dwordx2 v[{120+2*n}:{121+2*n}], v26, s[{sWR}:{sWR+3}], 0 offen offset:{128*rowtile(n)} {sc}", "y")

def red_write(n, i):
    return I(f"ds_write_b128 v{19+i}, {v(ACC + 16*(n & 1) + 4*i, 4)} offset:{12288*(n & 1)}", ("rw", n))
def red_finish(n):
    d = ACC + 16*(n & 1); p = PR + 4*n; q = XN + 2*n
    L = [f"ds_read_b128 {v(d + 4*i, 4)}, v22 offset:{12288*(n & 1) + 1024*i}" for i in range(3)]
    L += [f"ds_read_b64 v[2:3], v23 offset:{2048*n}"]
    L += [f"v_lshlrev_b32 v1, 16, v{q}", f"v_mul_f32 v8, v{q+1}, v{q+1}"]
    L += [f"v_lshlrev_b32 v{p}, 16, v2", f"v_and_b32 v{p+1}, s{sMSK}, v2", f"v_lshlrev_b32 v{p+2}, 16, v3", f"v_and_b32 v{p+3}, s{sMSK}, v3"]
    L += [f"v_add_f32 v{4+r}, v{p+r}, v1" for r in range(4)]
    L += ["v_cvt_pk_bf16_f32 v2, v4, v5", "v_cvt_pk_bf16_f32 v3, v6, v7"]
    L += ["v_lshlrev_b32 v4, 16, v2", f"v_and_b32 v5, s{sMSK}, v2", "v_lshlrev_b32 v6, 16, v3", f"v_and_b32 v7, s{sMSK}, v3"]
    L += [f"v_mul_f32 v{4+r}, v{4+r}, v{q+1}" for r in range(4)]
    L += [f"v_cvt_pk_bf16_f32 v{q}, v4, v5", f"v_cvt_pk_bf16_f32 v{q+1}, v6, v7"]
    L += [f"v_add_f32 v{d+r}, v{d+r}, v{d+4+r}" for r in range(4)]
    L += [f"v_add_f32 v{d+8+r}, v{d+8+r}, v{d+12+r}" for r in range(4)]
    L += [f"v_add_f32 v{d+r}, v{d+r}, v{d+8+r}" for r in range(4)]
    L += [f"v_fmac_f32 v{p+r}, v{d+r}, v8" for r in range(4)]
    return L

def g2_main(P, sc="sc1", hwait=None, ywait=None):
    carry = []
    for n in range(8):
        bb = []
        for i in range(4):
            acc = v(ACC + 16*(n & 1) + 4*i, 4)
            for j in range(14):
                bb.append(f"{M16} {acc}, {a(16*j + 4*i, 4)}, {R(hreg(n, j), 4)}, {acc if j else 0}")
        ld = []
        if n + 2 < 8:
            if hwait and (n + 2) % 2 == 0: P(hwait((n + 2) >> 1))
            hl = h_loads(n + 2, sc); ld = [(k*56//len(hl), None, x) for k, x in enumerate(hl)]
        rw = [(14*(i+1) + 2, None, red_write(n, i)) for i in range(3)]
        fin = []
        if n >= 1:
            pre = [WaitLG([("rw", n-1)])] + ([WaitVM(["xd"])] if n == 1 else []) + ["s_barrier"]
            fin = [(3, None, x) for x in pre + red_finish(n-1)]
        left = weave(P, bb, [ld, rw, fin], 2)
        flush(P, left)
    if ywait: P(ywait)
    for n in range(8): P(y_load(n, sc))
    P(WaitLG([("rw", 7)])); P("s_barrier"); P(red_finish(7))
    for n in range(8):
        p = PR + 4*n; q = XN + 2*n; y = 120 + 2*n
        P([f"v_lshlrev_b32 v2, 16, v{q}", f"v_and_b32 v3, s{sMSK}, v{q}", f"v_lshlrev_b32 v4, 16, v{q+1}", f"v_and_b32 v5, s{sMSK}, v{q+1}"])
        P([f"v_lshlrev_b32 v6, 16, v{y}", f"v_and_b32 v7, s{sMSK}, v{y}", f"v_lshlrev_b32 v8, 16, v{y+1}", f"v_and_b32 v9, s{sMSK}, v{y+1}"])
        P(f"v_pk_fma_f32 v[{p}:{p+1}], v[2:3], v[6:7], v[{p}:{p+1}]"); P(f"v_pk_fma_f32 v[{p+2}:{p+3}], v[4:5], v[8:9], v[{p+2}:{p+3}]")
        P(f"v_cvt_pk_bf16_f32 v{y}, v{p}, v{p+1}"); P(f"v_cvt_pk_bf16_f32 v{y+1}, v{p+2}, v{p+3}")
        P(f"ds_write_b64 v23, v[{y}:{y+1}] offset:{2048*n}")
    P.waitall(vm=False); P("s_barrier")
    for b in range(4): P(f"ds_read_b128 v[{140+4*b}:{143+4*b}], v27 offset:{1024*b}")
    for b in range(4):
        P(f"s_movk_i32 s{sT3}, {8*b*1280}")
        P(f"buffer_store_dwordx4 v[{140+4*b}:{143+4*b}], v{28 if b & 1 else 24}, s[{sOR}:{sOR+3}], s{sT3} offen")
```

```python
import sys
from gen_common import *
import gen_aux as AX, gen_g1 as G1, gen_g2 as G2

def decode_roles(P, aux_label):
    P("s_and_b32 s34, s2, 7"); P("s_lshr_b32 s35, s2, 3")
    P("s_and_b32 s52, s34, 1"); P("s_lshl_b32 s52, s52, 2"); P("s_and_b32 s53, s35, 3"); P(f"s_add_u32 s{G1.sRB}, s52, s53")
    P("s_lshr_b32 s52, s34, 1"); P("s_mul_i32 s52, s52, 7"); P("s_lshr_b32 s54, s35, 2"); P(f"s_add_u32 s{G1.sCB}, s52, s54")
    P("s_cmp_eq_u32 s54, 7"); P(f"s_cbranch_scc1 {aux_label}")
    P(f"s_cmp_eq_u32 s{G1.sCB}, 27"); P(f"s_cbranch_scc1 {aux_label}")
def decode_aux(P):
    P("s_and_b32 s52, s34, 1"); P("s_add_u32 s52, s52, 8"); P("s_cmp_eq_u32 s54, 7"); P(f"s_cselect_b32 s{AX.sGA}, s34, s52")
    P(f"s_mov_b32 s{AX.sPP}, s53")

def gen():
    out = ["; @launch kernel=prep_kernel grid=(256,1,1) block=(256,1,1) lds=163840",
           "; @launch kernel=mid_kernel grid=(256,1,1) block=(256,1,1) lds=163840",
           "; @launch kernel=fin_kernel grid=(256,1,1) block=(256,1,1) lds=163840",
           '.amdgcn_target "amdgcn-amd-amdhsa--gfx950"', ".text"]
    P = Prog(); header(P, "prep_kernel")
    P("s_cmp_ge_u32 s2, 256"); P("s_cbranch_scc1 P_END")
    load_args(P); wave_id(P); P.waitall()
    decode_roles(P, "P_AUX")
    P(f"s_cmp_ge_u32 s{G1.sCB}, 16"); P("s_cbranch_scc1 P_END")
    G1.g1_srds(P); G1.stats_issue(P); G1.stats_compute(P); P.waitall(); P("s_endpgm")
    P.label("P_AUX"); decode_aux(P)
    AX.prep_issue(P); AX.prep_addrs(P)
    for i in range(4): AX.prep_round(P, i)
    P.waitall(); P.label("P_END"); P("s_endpgm")
    out.append(P.text()); print("prep", P.nins, P.nnop, P.stats, file=sys.stderr)
    P = Prog(); header(P, "mid_kernel")
    P("s_cmp_ge_u32 s2, 256"); P("s_cbranch_scc1 M_END")
    load_args(P); wave_id(P); P.waitall()
    decode_roles(P, "M_AUX")
    G1.g1_srds(P); G1.g1_dma_setup(P)
    for c in range(5): P(G1.dma_chunk(c))
    G1.g1_addr_setup(P); G1.g1_main(P)
    P.waitall(); P.label("M_END"); P("s_endpgm")
    print("g1", P.nins, P.nnop, P.stats, file=sys.stderr)
    P.label("M_AUX"); decode_aux(P)
    srd(P, AX.sWR, sWS, 0x1000000); srd(P, AX.sHR, sSK, S_*D_*2)
    P(f"s_mul_i32 s{AX.sLB}, s{sW}, {AX.AUX_WREG}")
    AX.conv_setup(P)
    HO, XO = 32, 4480
    P("v_mov_b32 v2, 0"); P("v_lshlrev_b32 v1, 2, v0"); P(f"v_add_u32 v1, s{AX.sLB}, v1")
    P("ds_write_b32 v1, v2 offset:4224")
    P("s_mov_b64 exec, 0xffffffff"); P("ds_write_b32 v1, v2"); P("s_mov_b64 exec, -1")
    P("s_mov_b32 s61, 0")
    P(f"s_lshl_b32 s62, s{AX.sGA}, 4"); P(f"s_lshl_b32 s63, s{AX.sPP}, 2"); P("s_add_u32 s62, s62, s63")
    P.waitall()
    P.label("M_LOOP")
    P("s_lshl_b32 s63, s62, 2"); P(f"s_add_u32 s63, s63, s{sW}")
    P("s_lshl_b32 s64, s63, 12"); P(f"s_add_u32 m0, s{AX.sLB}, 128"); P("v_lshlrev_b32 v1, 4, v0")
    for i in range(4): P(f"buffer_load_dwordx4 v1, s[{AX.sHR}:{AX.sHR+3}], s64 offen offset:{1024*i} lds", tag="h")
    P("s_lshl_b32 s65, s62, 14")
    for i in range(4):
        P(f"s_add_u32 s66, s65, {WS_KVT + 4096*i}")
        P(f"buffer_load_dwordx4 v[{64+4*i}:{67+4*i}], v125, s[{AX.sWR}:{AX.sWR+3}], s66 offen sc1")
    P("v_mov_b32 v2, s64"); P("s_lshl_b32 s63, s63, 1"); P("v_mov_b32 v3, s63")
    P(f"global_load_ushort v4, v2, s[{sSK}:{sSK+1}]"); P(f"global_load_ushort v5, v3, s[{sSD}:{sSD+1}]")
    for i in range(4): P(f"ds_write_b128 v126, v[{64+4*i}:{67+4*i}] offset:{XO + 1024*i}")
    P("v_lshlrev_b32 v4, 16, v4"); P("v_lshlrev_b32 v5, 16, v5"); P("v_add_f32 v4, v4, v5"); P("v_cvt_pk_bf16_f32 v4, v4, v4")
    P(f"v_mov_b32 v2, s{AX.sLB}"); P(WaitVM(["h"])); P("ds_write_b16 v2, v4 offset:128")
    P.waitall()
    AX.conv_body(P, HO, XO)
    P(f"s_add_u32 s65, s65, {WS_YQ}")
    AX.conv_out(P, 65)
    P.waitall(); P("s_barrier")
    P("s_add_u32 s62, s62, 1"); P("s_add_u32 s61, s61, 1"); P("s_cmp_lt_u32 s61, 4"); P("s_cbranch_scc1 M_LOOP")
    P("s_endpgm")
    out.append(P.text()); print("mid", P.nins, P.nnop, P.stats, file=sys.stderr)
    P = Prog(); header(P, "fin_kernel")
    P("s_cmp_ge_u32 s2, 160"); P("s_cbranch_scc1 F_END")
    load_args(P); wave_id(P); P.waitall()
    P(f"s_and_b32 s{G2.sRB2}, s2, 7"); P("s_lshr_b32 s35, s2, 3"); P(f"s_and_b32 s{G2.sP2}, s35, 1"); P(f"s_lshr_b32 s{G2.sCB2}, s35, 1")
    G2.g2_setup(P)
    P(f"s_mul_i32 s{G2.sM0W}, s{sW}, 28672"); P(f"s_add_u32 s{G2.sM0W}, s{G2.sM0W}, 49152")
    for i in range(4): P(f"v_add_u32 v{14+i}, s{G2.sM0W}, v{14+i}")
    for j in range(7): P(G2.wd_dma(j, 4096*j))
    P(G2.x_dma())
    for n in range(8): P(G2.st_load(n))
    P(G2.h_loads(0))
    for j in range(7):
        P(WaitVM([("wd", j)])); P(G2.wd_reads(j, 4096*j)); P.waitall(vm=False); P(G2.wd_dma(j+7, 4096*j))
    P(f"s_cmp_lt_u32 s{sW}, 2"); P("s_cbranch_scc1 F_NOZ")
    for r in range(16): P(f"v_accvgpr_write_b32 a{r}, 0")
    P.label("F_NOZ")
    for j in range(7, 14):
        P(WaitVM([("wd", j)])); P(G2.wd_reads(j, 4096*(j-7)))
        if j == 7: P(G2.h_loads(1))
    G2.g2_main(P)
    P.label("F_END"); P("s_endpgm")
    out.append(P.text()); print("fin", P.nins, P.nnop, P.stats, file=sys.stderr)
    out.append('.section .rodata,"a"')
    for n in ("prep_kernel", "mid_kernel", "fin_kernel"): out.append(".p2align 6\n" + descriptor(n))
    return "\n".join(out)
if __name__ == "__main__":
    open(sys.argv[1], "w").write(gen())
```
